```python
import torch

def _softmax(x, axis=-1):
    return torch.softmax(x, dim=axis)
def _gelu(x):
    return torch.nn.functional.gelu(x, approximate="tanh")
def _silu(x):
    return torch.nn.functional.silu(x)
def _sigmoid(x):
    return torch.sigmoid(x)
def _layernorm(x, axis=-1, eps=1e-5):
    m = x.mean(dim=axis, keepdim=True)
    v = x.var(dim=axis, keepdim=True, unbiased=False)
    return (x - m) / torch.sqrt(v + eps)
def _scatter_add(tgt, idx, src, axis=0):
    return tgt.clone().index_add_(axis, idx, src)
def _segment_sum(src, seg, n):
    out = torch.zeros((n,) + src.shape[1:], dtype=src.dtype)
    return out.index_add_(0, seg, src)
def _pad(x, pw):
    flat = tuple(v for pair in reversed(pw) for v in pair)
    return torch.nn.functional.pad(x, flat)

kernel_name = 'concat_heads__grouped_kv_mqa__ssm_conv_s4d__prompt'

def setup_inputs():

    _w = (lambda a: (lambda t: t.to(torch.bfloat16) if t.is_floating_point() else t)(torch.as_tensor(a)))
    def _A_setup():
        B, S, D, H = 1, 2048, 512, 32
        Dh = D // H
        return {
            "x": _w((lambda *s: torch.randn(*s, dtype=torch.bfloat16) * 0.05)(B, S, D)),
            "wq": _w((lambda *s: torch.randn(*s, dtype=torch.bfloat16) * 0.8)(D, H * Dh)),
            "wk": _w((lambda *s: torch.randn(*s, dtype=torch.bfloat16) * 0.8)(D, Dh)),
            "wv": _w((lambda *s: torch.randn(*s, dtype=torch.bfloat16) * 0.05)(D, Dh)),
            "wo": _w((lambda *s: torch.randn(*s, dtype=torch.bfloat16) * 0.05)(H * Dh, D)),
        }
    _A_in = _A_setup()

    def _B_setup():
        Bsz, L, D, N = 1, 2048, 512, 128
        return {
            "u": _w((lambda *s: torch.randn(*s, dtype=torch.bfloat16) * 0.05)(Bsz, L, D)),
            "log_A_real": _w((lambda *s: torch.randn(*s, dtype=torch.bfloat16) * 6.4)(D, N) * 0.5),
            "A_imag": _w((lambda *s: torch.randn(*s, dtype=torch.bfloat16) * 0.05)(D, N) * 3.14),
            "C_real": _w((lambda *s: torch.randn(*s, dtype=torch.bfloat16) * 0.05)(D, N) / N ** 0.5),
            "C_imag": _w((lambda *s: torch.randn(*s, dtype=torch.bfloat16) * 0.05)(D, N) / N ** 0.5),
            "log_dt": _w((lambda *s: torch.randn(*s, dtype=torch.bfloat16) * 0.05)(D) * 0.5 - 4.0),
            "D_skip": _w((lambda *s: torch.randn(*s, dtype=torch.bfloat16) * 0.05)(D)),
        }
    _B_in = _B_setup()

    return {
        "A_x": _A_in["x"],
        "A_wq": _A_in["wq"],
        "A_wk": _A_in["wk"],
        "A_wv": _A_in["wv"],
        "A_wo": _A_in["wo"],
        "B_u": _B_in["u"],
        "B_log_A_real": _B_in["log_A_real"],
        "B_A_imag": _B_in["A_imag"],
        "B_C_real": _B_in["C_real"],
        "B_C_imag": _B_in["C_imag"],
        "B_log_dt": _B_in["log_dt"],
        "B_D_skip": _B_in["D_skip"],
    }

def reference(A_x, A_wq, A_wk, A_wv, A_wo, B_u, B_log_A_real, B_A_imag, B_C_real, B_C_imag, B_log_dt, B_D_skip):
    def _A_ref(x, wq, wk, wv, wo):
        B, S, D = x.shape
        H = 32
        Dh = D // H
        q = (lambda x, *d: x.permute(*d))((x @ wq).reshape(B, S, H, Dh), 0, 2, 1, 3)
        k = x @ wk
        v = x @ wv
        scores = torch.einsum("bhqd,bkd->bhqk", q, k) * (Dh ** -0.5)
        p = _softmax(scores, axis=-1)
        o = torch.einsum("bhqk,bkd->bhqd", p, v)
        return (lambda x, *d: x.permute(*d))(o, 0, 2, 1, 3).reshape(B, S, H * Dh) @ wo

    def _B_ref(u, log_A_real, A_imag, C_real, C_imag, log_dt, D_skip):
        L = u.shape[1]
        dt = torch.exp(log_dt)
        A = -torch.exp(log_A_real) + 1j * A_imag
        C = (C_real + 1j * C_imag) * dt[:, None]
        pos = (lambda x, dt: x.to(dt))(torch.arange(L), log_dt.dtype)
        P = torch.exp((A * dt[:, None])[:, :, None] * pos[None, None, :])
        K = 2.0 * torch.einsum("dn,dnl->dl", C, P).real
        L2 = 2 * L
        u_t = (lambda x, *d: x.permute(*d))(u, 0, 2, 1)
        Kf = (lambda x, *a, **k: torch.fft.rfft(x.float(), *a, **k))(K, L2)
        Uf = (lambda x, *a, **k: torch.fft.rfft(x.float(), *a, **k))(u_t, L2)
        y = (lambda x, *a, **k: torch.fft.irfft(x, *a, **k).to(torch.bfloat16))(Uf * Kf[None, :, :], L2)[:, :, :L]
        y = (lambda x, *d: x.permute(*d))(y, 0, 2, 1)
        return y + u * D_skip[None, None, :]

    a = _A_ref(A_x, A_wq, A_wk, A_wv, A_wo)
    b = _B_ref(B_u, B_log_A_real, B_A_imag, B_C_real, B_C_imag, B_log_dt, B_D_skip)
    return torch.concatenate([a, b], axis=-1)
```

```python
import re

TRANS = ("v_exp_", "v_log_", "v_rcp_", "v_rsq_", "v_sqrt_", "v_sin_", "v_cos_")

def regs_of(tok):
    tok = tok.strip()
    tok = tok.lstrip("-").strip("|")
    m = re.fullmatch(r"([vsa])\[(\d+):(\d+)\]", tok)
    if m:
        return {(m.group(1), i) for i in range(int(m.group(2)), int(m.group(3)) + 1)}
    m = re.fullmatch(r"([vsa])(\d+)", tok)
    if m:
        return {(m.group(1), int(m.group(2)))}
    if tok in ("vcc", "vcc_lo", "vcc_hi"):
        return {("vcc", 0)}
    if tok in ("exec", "exec_lo", "exec_hi"):
        return {("exec", 0)}
    if tok == "m0":
        return {("m0", 0)}
    return set()

class Ins:
    def __init__(self, text):
        self.text = text
        t = text.split(";")[0].strip()
        self.op = t.split()[0]
        rest = t[len(self.op):].strip()
        ops, cur, depth = [], "", 0
        for ch in rest:
            if ch == "[": depth += 1
            if ch == "]": depth -= 1
            if ch == "," and depth == 0:
                ops.append(cur); cur = ""
            else:
                cur += ch
        if cur.strip(): ops.append(cur)
        self.mods = ""
        cl = []
        for o in ops:
            o = o.strip()
            parts = o.split(None, 1)
            cl.append(parts[0])
            if len(parts) > 1: self.mods += " " + parts[1]
        self.ops = cl
        op = self.op
        self.is_mfma = op.startswith("v_mfma")
        self.is_valu = op.startswith("v_") and not self.is_mfma
        self.is_salu = op.startswith("s_")
        self.is_vmem = op.startswith(("buffer_", "global_"))
        self.is_ds = op.startswith("ds_")
        self.is_trans = op.startswith(TRANS)
        self.is_lds_dma = self.is_vmem and re.search(r"\blds\b", self.mods) is not None
        R = [regs_of(o) for o in cl]
        self.wr, self.rd = set(), set()
        if self.is_mfma:
            self.wr = R[0]; self.A, self.B, self.C = R[1], R[2], R[3]
            self.rd = R[1] | R[2] | R[3]
            self.passes = 8 if "32x32x16" in op else 4
        elif self.is_valu:
            if op.startswith("v_permlane") and "swap" in op:
                self.wr = R[0] | R[1]; self.rd = R[0] | R[1]
            elif op == "v_nop":
                pass
            else:
                self.wr = R[0]
                for r in R[1:]: self.rd |= r
                if op.startswith(("v_fmac", "v_pk_fmac", "v_dot2c")) or "UNUSED_PRESERVE" in self.mods or "mixhi" in op or "mixlo" in op:
                    self.rd |= R[0]
                if op.startswith(("v_add_co", "v_sub_co", "v_addc_co", "v_subb_co")):
                    self.wr |= R[1]
                if op.startswith("v_cmpx"):
                    self.wr |= {("exec", 0)}
        elif self.is_vmem:
            if "store" in op or "atomic" in op:
                for r in R: self.rd |= r
                self.data = R[0]
            elif self.is_lds_dma:
                for r in R: self.rd |= r
                self.rd |= {("m0", 0)}
            else:
                self.wr = R[0]
                for r in R[1:]: self.rd |= r
        elif self.is_ds:
            if op.startswith("ds_read") or "_rtn" in op or "permute" in op:
                self.wr = R[0]
                for r in R[1:]: self.rd |= r
            else:
                for r in R: self.rd |= r
        elif self.is_salu:
            if op.startswith(("s_cmp", "s_cbranch", "s_branch", "s_waitcnt", "s_nop", "s_barrier", "s_sleep", "s_setprio", "s_endpgm", "s_bitcmp")):
                for r in R: self.rd |= r
            else:
                if R: self.wr = R[0]
                for r in R[1:]: self.rd |= r
        self.states = 1
        if op == "s_nop":
            self.states = int(cl[0], 0) + 1

def need(p, c):
    n = 0
    vw = {r for r in p.wr if r[0] in "va" and r[0] != "vcc"}
    sw = {r for r in p.wr if r[0] in ("s", "vcc")}
    if p.is_valu:
        if c.is_mfma and vw & c.rd: n = max(n, 2)
        if p.is_trans and (c.is_valu and not c.is_trans) and vw & c.rd: n = max(n, 1)
        if c.op.startswith(("v_readfirstlane", "v_readlane")) and vw & c.rd: n = max(n, 1)
        if c.op.startswith("v_permlane") and vw & c.rd: n = max(n, 2)
        if c.is_valu and ("dpp" in c.op or "row_" in c.mods or "quad_perm" in c.mods) and vw & c.rd: n = max(n, 2)
        if sw:
            rd = set(c.rd)
            if c.op.startswith("v_cndmask") and len(c.ops) == 3: rd |= {("vcc", 0)}
            if c.is_valu and sw & rd: n = max(n, 2)
            if c.op.startswith(("v_readlane", "v_writelane")) and sw & rd: n = max(n, 4)
            if c.is_vmem and sw & rd: n = max(n, 5)
        if ("sdwa" in p.op or "op_sel" in p.mods and not p.op.startswith("v_pk")) and c.is_valu and vw & (c.rd | c.wr): n = max(n, 1)
        if ("exec", 0) in p.wr and (c.is_mfma or c.op.startswith(("v_permlane", "v_readlane", "v_readfirstlane"))): n = max(n, 5)
    if p.is_mfma:
        big = 12 if p.passes == 8 else 8
        if c.is_mfma:
            if p.wr & (c.A | c.B): n = max(n, big)
            if p.wr & c.C:
                if not (p.wr == c.C and p.passes == c.passes): n = max(n, big - 2)
        elif c.is_valu or c.is_vmem or c.is_ds:
            if p.wr & (c.rd | c.wr): n = max(n, big)
        if c.is_valu and p.C & c.wr: n = max(n, 7 if p.passes == 8 else 3)
    if p.is_salu and ("m0", 0) in p.wr and c.is_lds_dma: n = max(n, 1)
    if p.is_vmem and ("store" in p.op) and p.op.endswith(("x3", "x4")) and c.wr & p.data:
        n = max(n, 2)
    return n

class Asm:
    def __init__(self):
        self.lines = []
        self.nlabel = 0
    def __call__(self, text):
        for l in text.split("\n"):
            l = l.strip()
            if not l: continue
            if l.endswith(":") and " " not in l:
                self.lines.append(("label", l))
            elif l.startswith((".", ";")):
                self.lines.append(("raw", l))
            else:
                self.lines.append(("ins", l))
    def label(self, base="L"):
        self.nlabel += 1
        return f"{base}_{self.nlabel}"
    def text(self):
        out = []
        for k, t in self.lines:
            out.append(t if k == "label" else "    " + t)
        return "\n".join(out) + "\n"
    def check(self, autofix=False):
        seq = []
        labels = {}
        for idx, (k, t) in enumerate(self.lines):
            if k == "label": labels[t[:-1]] = len(seq)
            elif k == "ins": seq.append((idx, Ins(t)))
        problems = []
        def scan(window, start, limit):
            pass
        W = 14
        def check_from(hist, j, budget):
            dist_extra = 0
            k = j
            while k < len(seq) and dist_extra < W:
                c = seq[k][1]
                d = dist_extra
                for p in reversed(hist):
                    if d >= W: break
                    nd = need(p, c)
                    if nd > d:
                        problems.append((seq[k][0], p.text, c.text, nd, d))
                    d += p.states
                dist_extra += c.states
                if c.op in ("s_branch", "s_endpgm"): break
                k += 1
        for i, (idx, c) in enumerate(seq):
            d = 0
            for j in range(i - 1, max(-1, i - 1 - W), -1):
                p = seq[j][1]
                if p.op in ("s_branch", "s_endpgm"): break
                nd = need(p, c)
                if nd > d:
                    problems.append((idx, p.text, c.text, nd, d))
                d += p.states
                if d >= W: break
            if c.op.startswith(("s_cbranch", "s_branch")) and c.ops[0] in labels:
                hist = [seq[j][1] for j in range(max(0, i - W), i + 1)]
                check_from(hist, labels[c.ops[0]], W)
        return problems
```

```python
import sys, struct, math
sys.path.insert(0, "work")
from asmlib import Asm

NAME = "concat_heads__grouped_kv_mqa__ssm_conv_s4d__prompt"
STAMPS = False

def f32(x):
    return "0x%08x" % struct.unpack("<I", struct.pack("<f", x))[0]
LOG2E = math.log2(math.e)

WQLO = 0
XT = 32768
WQHI = 98304
WO = 65536
TB = 0
TBS = 60 * 272
YX = 0
CB = 0
R3 = 131072
WKV = R3
KS = R3
KSS = 4160
UB = R3 + 16896
PART = UB
QX = UB + 4096
CNT = UB + 12288
C_KV, C_QDONE, C_XBAR, C_O, C_QF = 0, 4, 8, 12, 16
LDS_TOTAL = 163840
assert CNT + 64 <= LDS_TOTAL
FL1 = 0x40000
FL2 = 0x50000
OFR = 0x100000
STAMP_BASE = 0x400000
SPIN = 1 << 16

S_WS = "s[4:7]"; S_A = "s[8:11]"; S_B = "s[12:15]"
P_X, P_WQ, P_WK, P_WV, P_WO, P_U, P_LAR, P_AIM, P_CR, P_CI, P_LDT, P_D, P_OUT, P_DBG, P_WS = 16, 18, 20, 22, 24, 26, 28, 30, 32, 34, 36, 38, 40, 42, 44
sWV, sXCD, sIDX, sQT, sHG, sCP = 46, 47, 48, 49, 50, 51
sG, sKH = 52, 53
sT0, sT1, sT2, sT3, sT4, sT5 = 54, 55, 56, 57, 58, 59
sTOK = 60
sSPIN = 62
sKV = 63
S_O = "s[64:67]"
sM0, sM1 = 68, 70
sC0 = 72
sC1, sC2, sC3 = 74, 75, 76
sST = 78
OPT = set()

def sp(n): return f"s[{n}:{n+1}]"
def vr(a, n): return f"v[{a}:{a+n-1}]"

class G:
    def __init__(self):
        self.a = Asm()
        self.nst = 0
    def stamp(self, k):
        if STAMPS:
            self.a(f"s_memrealtime {sp(sST + 2 * k)}")
    def cstamp(self, k):
        if STAMPS:
            self.a(f"s_memtime {sp(sST + 2 * k)}")
    def srd(self, base, ptr, size):
        a = self.a
        a(f"s_mov_b32 s{base}, s{ptr}")
        a(f"s_mov_b32 s{base+1}, s{ptr+1}")
        a(f"s_mov_b32 s{base+2}, {size:#x}")
        a(f"s_mov_b32 s{base+3}, 0x00020000")
    def dump_stamps(self, n):
        if not STAMPS: return
        a = self.a
        a("s_waitcnt lgkmcnt(0)")
        a("s_mov_b64 exec, 1")
        a(f"s_lshl_b32 s{sT0}, s2, 10")
        a(f"s_lshl_b32 s{sT1}, s{sWV}, 7")
        a(f"s_add_u32 s{sT0}, s{sT0}, s{sT1}")
        a(f"s_add_u32 s{sT0}, s{sT0}, {STAMP_BASE:#x}")
        a("v_mov_b32 v1, 0")
        for k in range(n):
            a(f"v_mov_b32 v2, s{sST+2*k}")
            a(f"buffer_store_dword v2, v1, {S_WS}, s{sT0} offen offset:{4*k}")
        a("s_waitcnt vmcnt(0)")

    def head(self):
        a = self.a
        self.stamp(0)
        a("s_cmp_ge_u32 s2, 256")
        a("s_cbranch_scc1 L_end")
        a("s_load_dwordx16 s[16:31], s[0:1], 0")
        a("s_load_dwordx8 s[32:39], s[0:1], 64")
        a("s_load_dwordx4 s[40:43], s[0:1], 96")
        a("s_load_dwordx2 s[44:45], s[0:1], 112")
        a("v_lshrrev_b32 v1, 6, v0")
        a("v_and_b32 v0, 63, v0")
        a(f"v_readfirstlane_b32 s{sWV}, v1")
        a(f"s_and_b32 s{sXCD}, s2, 7")
        a(f"s_lshr_b32 s{sIDX}, s2, 3")
        a(f"s_lshr_b32 s{sQT}, s2, 6")
        a(f"s_lshl2_add_u32 s{sQT}, s{sXCD}, s{sQT}")
        a(f"s_and_b32 s{sHG}, s{sIDX}, 7")
        a(f"s_lshl_b32 s{sCP}, s{sXCD}, 5")
        a(f"s_add_u32 s{sCP}, s{sCP}, s{sIDX}")
        a(f"s_bfe_u32 s{sG}, s{sWV}, 0x10001")
        a(f"s_and_b32 s{sKH}, s{sWV}, 1")
        a("v_lshlrev_b32 v5, 4, v0")
        a(f"s_cmp_ge_u32 s{sWV}, 4")
        a("s_cbranch_scc1 L_X")

    def get_token(self, vt):
        a = self.a
        L = a.label("L_tok"); Ld = a.label("L_tokd")
        a(f"s_mov_b32 s{sSPIN}, {SPIN}")
        a(f"{L}:")
        a(f"v_readfirstlane_b32 s{sTOK}, v{vt}")
        a(f"v_readfirstlane_b32 s{sTOK+1}, v{vt+1}")
        a(f"s_cmp_lg_u32 s{sTOK}, 0")
        a(f"s_cbranch_scc1 {Ld}")
        a(f"global_load_dwordx2 {vr(vt,2)}, v1, {sp(P_DBG)} sc1")
        a(f"s_sub_u32 s{sSPIN}, s{sSPIN}, 1")
        a("s_waitcnt vmcnt(0)")
        a(f"s_cbranch_scc0 {L}")
        a(f"{Ld}:")

    def a_path(self):
        a = self.a
        Q, C, S0, S1, KV, O, F = 16, 32, 48, 64, 80, 128, 192
        SB = [S0, S1]
        a("v_and_b32 v2, 15, v0")
        a("v_lshrrev_b32 v3, 4, v0")
        a("v_lshlrev_b32 v4, 10, v2")
        a("v_lshl_add_u32 v4, v3, 4, v4")
        a(f"s_lshr_b32 s{sT0}, s{sHG}, 1")
        a(f"s_lshl_b32 s{sT1}, s{sQT}, 16")
        a(f"s_lshl_b32 s{sT2}, s{sT0}, 14")
        a(f"s_add_u32 s{sT1}, s{sT1}, s{sT2}")
        a(f"s_lshl_b32 s{sT2}, s{sWV}, 8")
        a(f"s_add_u32 s{sT1}, s{sT1}, s{sT2}")
        a(f"s_lshl_b32 s{sT2}, s{sWV}, 12")
        a(f"s_add_u32 s{sT3}, s{sT2}, {WKV}")
        a(f"s_mov_b32 m0, s{sT3}")
        a(f"s_and_b32 s{sT4}, s{sHG}, 1")
        a("s_waitcnt lgkmcnt(0)")
        a(f"s_cselect_b32 s12, s{P_WV}, s{P_WK}")
        a(f"s_cselect_b32 s13, s{P_WV+1}, s{P_WK+1}")
        a("s_mov_b32 s14, 0x4000")
        a("s_mov_b32 s15, 0x00020000")
        self.srd(8, P_X, 0x200000)
        for j in range(4):
            a(f"buffer_load_dwordx4 v5, {S_B}, s{sT2} offen offset:{1024*j} lds")
        for j in range(4):
            a(f"buffer_load_dwordx4 {vr(F+4*j,4)}, v4, {S_A}, s{sT1} offen offset:{64*j}")
        a("s_barrier")
        self.stamp(1)
        self.srd(4, P_WS, 0x10000000)
        a("v_mov_b32 v1, 0")
        a("v_lshlrev_b32 v6, 3, v2")
        a("v_lshl_add_u32 v6, v3, 8, v6")
        a(f"v_add_u32 v6, s{sT3}, v6")
        a("v_and_b32 v8, 31, v0")
        a("v_lshrrev_b32 v9, 5, v0")
        a("v_xor_b32 v10, v9, v2")
        a("v_lshlrev_b32 v10, 4, v10")
        a("v_lshl_add_u32 v10, v8, 8, v10")
        a(f"s_lshl_b32 s{sT5}, s{sG}, 13")
        a(f"s_add_u32 s{sT5}, s{sT5}, {XT}")
        a("v_min_u32 v250, 16, v8")
        a("v_mad_u32_u24 v250, v9, 17, v250")
        a("v_lshlrev_b32 v250, 4, v250")
        a("v_bfe_u32 v11, v0, 2, 2")
        a("v_lshl_add_u32 v12, v9, 3, v11")
        a("v_bfe_u32 v13, v0, 4, 1")
        a("v_bfe_u32 v14, v0, 1, 1")
        a("v_lshl_add_u32 v13, v13, 1, v14")
        a("v_bfe_u32 v14, v0, 3, 1")
        a(f"v_xor_b32 v14, s{sKH}, v14")
        a("v_lshl_add_u32 v13, v14, 2, v13")
        a("v_lshlrev_b32 v13, 4, v13")
        a("v_and_b32 v14, 1, v0")
        a("v_lshl_add_u32 v13, v14, 3, v13")
        a("v_lshl_add_u32 v7, v12, 7, v13")
        a("v_lshl_add_u32 v12, v9, 2, v11")
        a("v_lshl_add_u32 v251, v12, 7, v13")
        a(f"s_lshl_b32 s{sT1}, s{sKH}, 15")
        a(f"s_add_u32 s{sT1}, s{sT1}, {WO}")
        a(f"v_add_u32 v251, s{sT1}, v251")
        a(f"v_add_u32 v8, s{sT5}, v10")
        for s in range(1, 8):
            a(f"v_xor_b32 v{8+s}, {s<<5}, v8")
        a(f"s_cmp_lg_u32 s{sT4}, 0")
        a(f"s_movk_i32 s{sT1}, 272")
        a(f"s_cselect_b32 s{sT1}, s{sT1}, 512")
        a("v_and_b32 v252, 1, v3")
        a(f"v_mul_u32_u24 v252, s{sT1}, v252")
        a("v_lshl_add_u32 v252, v2, 4, v252")
        a("v_lshrrev_b32 v253, 1, v3")
        a("v_lshl_add_u32 v252, v253, 3, v252")
        a(f"s_and_b32 s{sT2}, s{sT0}, 1")
        a(f"s_lshl_b32 s{sT5}, s{sT2}, 8")
        a(f"s_lshl_b32 s{sT2}, s{sT2}, 10")
        a(f"s_add_u32 s{sT2}, s{sT2}, 1024")
        a(f"s_cmp_lg_u32 s{sT4}, 0")
        a(f"s_cselect_b32 s{sT2}, s{sT2}, s{sT5}")
        a(f"s_lshr_b32 s{sT0}, s{sT0}, 1")
        a(f"s_lshl1_add_u32 s{sT0}, s{sQT}, s{sT0}")
        a(f"s_mul_i32 s{sT1}, s{sT0}, 3072")
        a(f"s_add_u32 s{sT1}, s{sT1}, s{sT2}")
        a("v_mov_b32 v2, v250")
        a("v_mov_b32 v3, v251")
        a(f"v_mov_b32 v4, {CNT}")
        for r in range(O, O + 64, 2):
            a(f"v_pk_mov_b32 {vr(r,2)}, 0, 0")
        for r in range(S0, S0 + 16, 2):
            a(f"v_pk_mov_b32 {vr(r,2)}, 0, 0")
        for r in (S1 + 4, S1 + 6, S1 + 14, KV + 36 + 8, KV + 36 + 10):
            a(f"v_pk_mov_b32 {vr(r,2)}, 0, 0")
        a(f"s_lshl_b32 s{sT2}, s{sWV}, 10")
        a(f"s_add_u32 s{sT2}, s{sT2}, {PART}")
        a(f"v_add_u32 v253, s{sT2}, v5")
        a(f"v_add_u32 v254, {PART}, v5")
        a("v_mov_b32 v255, 1")
        a("s_waitcnt vmcnt(0)")
        self.stamp(2)
        W = F + 16
        for j in range(4):
            a(f"ds_read_b64_tr_b16 {vr(W+4*j,2)}, v6 offset:{1024*j}")
            a(f"ds_read_b64_tr_b16 {vr(W+4*j+2,2)}, v6 offset:{1024*j+128}")
        a(f"global_load_dwordx2 {vr(C,2)}, v1, {sp(P_DBG)} sc1")
        D = F + 32
        a(f"s_cmp_lg_u32 s{sT4}, 0")
        a("s_cbranch_scc1 L_kv_v")
        for j in range(4):
            a(f"s_waitcnt lgkmcnt({6-2*j})")
            a(f"v_mfma_f32_16x16x32_bf16 {vr(D,4)}, {vr(W+4*j,4)}, {vr(F+4*j,4)}, {'0' if j==0 else vr(D,4)}")
        a("s_branch L_kv_d")
        a("L_kv_v:")
        for j in range(4):
            a(f"s_waitcnt lgkmcnt({6-2*j})")
            a(f"v_mfma_f32_16x16x32_bf16 {vr(D,4)}, {vr(F+4*j,4)}, {vr(W+4*j,4)}, {'0' if j==0 else vr(D,4)}")
        a("s_nop 0")
        a("L_kv_d:")
        a("s_nop 6")
        a(f"ds_write_b128 v253, {vr(D,4)}")
        a("s_mov_b64 exec, 1")
        a(f"ds_add_rtn_u32 v253, v4, v255 offset:{C_KV}")
        a("s_mov_b64 exec, -1")
        a("s_waitcnt lgkmcnt(0)")
        a(f"v_readfirstlane_b32 s{sT2}, v253")
        a(f"s_cmp_lg_u32 s{sT2}, 3")
        a("s_cbranch_scc1 L_kv_skip")
        for j in range(4):
            a(f"ds_read_b128 {vr(F+4*j,4)}, v254 offset:{1024*j}")
        a(f"v_mov_b32 v{W}, 0x3f803f80")
        a(f"v_mov_b32 v{W+1}, 0x3f803f80")
        a(f"v_lshrrev_b32 v{W+2}, 1, v0")
        a(f"v_mul_u32_u24 v{W+2}, 272, v{W+2}")
        a(f"v_and_b32 v{W+3}, 1, v0")
        a(f"v_lshl_add_u32 v{W+2}, v{W+3}, 3, v{W+2}")
        a("s_waitcnt lgkmcnt(2)")
        a(f"v_pk_add_f32 {vr(F,2)}, {vr(F,2)}, {vr(F+4,2)}")
        a(f"v_pk_add_f32 {vr(F+2,2)}, {vr(F+2,2)}, {vr(F+6,2)}")
        a("s_waitcnt lgkmcnt(0)")
        a(f"v_pk_add_f32 {vr(F+8,2)}, {vr(F+8,2)}, {vr(F+12,2)}")
        a(f"v_pk_add_f32 {vr(F+10,2)}, {vr(F+10,2)}, {vr(F+14,2)}")
        a(f"v_pk_add_f32 {vr(F,2)}, {vr(F,2)}, {vr(F+8,2)}")
        a(f"v_pk_add_f32 {vr(F+2,2)}, {vr(F+2,2)}, {vr(F+10,2)}")
        a(f"v_cvt_pk_bf16_f32 v{F}, v{F}, v{F+1}")
        a(f"v_cvt_pk_bf16_f32 v{F+1}, v{F+2}, v{F+3}")
        a(f"buffer_store_dwordx2 {vr(F,2)}, v252, {S_WS}, s{sT1} offen sc1")
        a(f"s_cmp_eq_u32 s{sT4}, 0")
        a("s_cbranch_scc1 L_kv_noones")
        a("s_mov_b64 exec, 15")
        a(f"buffer_store_dwordx2 {vr(W,2)}, v{W+2}, {S_WS}, s{sT1} offen offset:256 sc1")
        a("s_mov_b64 exec, -1")
        a("L_kv_noones:")
        a(f"s_lshl_b32 s{sT2}, s{sQT}, 7")
        a(f"s_lshl4_add_u32 s{sT2}, s{sHG}, s{sT2}")
        a(f"s_add_u32 s{sT2}, s{sT2}, {FL1:#x}")
        a("s_waitcnt vmcnt(0)")
        self.get_token(C)
        a("s_mov_b64 exec, 1")
        a(f"buffer_store_dwordx2 {vr(C,2)}, v1, {S_WS}, s{sT2} offen sc1")
        a("s_mov_b64 exec, -1")
        a("L_kv_skip:")
        self.stamp(3)
        a(f"s_lshl_b32 s{sT2}, s{sKH}, 11")
        a(f"s_add_u32 s{sT2}, s{sT2}, {FL1:#x}")
        a(f"s_mov_b32 s{sT0}, 0")
        a("L_qh:")
        a("s_barrier")
        def rd(s):
            r = F + 8 * (s % 8)
            a(f"ds_read_b128 {vr(r,4)}, v{8+s%8} offset:{(s//8)*16384}")
            a(f"ds_read_b64_tr_b16 {vr(r+4,2)}, v7 offset:{s*2048}")
            a(f"ds_read_b64_tr_b16 {vr(r+6,2)}, v7 offset:{s*2048+512}")
        for s in range(5): rd(s)
        a(f"buffer_load_dwordx2 {vr(C+2,2)}, v5, {S_WS}, s{sT2} offen sc1")
        a(f"buffer_load_dwordx2 {vr(C+4,2)}, v5, {S_WS}, s{sT2} offen offset:1024 sc1")
        for s in range(16):
            r = F + 8 * (s % 8)
            a(f"s_waitcnt lgkmcnt({min(12, 3*(15-s))})")
            a(f"v_mfma_f32_32x32x16_bf16 {vr(S0,16)}, {vr(r+4,4)}, {vr(r,4)}, {vr(S0,16)}")
            if s + 5 < 16: rd(s + 5)
            if s == 11:
                a(f"v_add_u32 v7, {WQHI}, v7")
                for k in range(4): a(f"v_add_u32 v{8+k}, 32768, v{8+k}")
            if s == 12:
                for k in range(4, 8): a(f"v_add_u32 v{8+k}, 32768, v{8+k}")
        a(f"s_xor_b32 s{sT0}, s{sT0}, 1")
        a("s_cbranch_scc1 L_qh")
        self.stamp(4)
        a(f"s_mov_b32 s{sC0}, {f32(0.25*LOG2E)}")
        a(f"s_mov_b32 s{sC0+1}, s{sC0}")
        a(f"s_lshl_b32 s{sT0}, s{sWV}, 11")
        a(f"v_add_u32 v6, s{sT0}, v5")
        a("v_xor_b32 v7, 0x800, v6")
        a("v_mov_b32 v11, 1")
        a(f"s_lshl_b32 s{sT0}, s{sWV}, 2")
        a(f"v_add_u32 v8, s{sT0}, v4")
        a("v_xor_b32 v9, 4, v8")
        a("s_nop 1")
        for r in range(0, 16, 2):
            a(f"v_pk_mul_f32 {vr(S0+r,2)}, {vr(S0+r,2)}, {sp(sC0)}")
        for r in range(8):
            a(f"v_cvt_pk_bf16_f32 v{Q+r}, v{S0+2*r}, v{S0+2*r+1}")
        a(f"v_add_u32 v6, {QX}, v6")
        a(f"v_add_u32 v7, {QX}, v7")
        a(f"ds_write_b128 v6, {vr(Q,4)}")
        a(f"ds_write_b128 v6, {vr(Q+4,4)} offset:1024")
        a(f"ds_write_b32 v8, v11 offset:{C_QF}")
        a("L_qx:")
        a(f"ds_read_b32 v10, v9 offset:{C_QF}")
        a(f"ds_read_b128 {vr(Q+8,4)}, v7")
        a(f"ds_read_b128 {vr(Q+12,4)}, v7 offset:1024")
        a("s_waitcnt lgkmcnt(0)")
        a(f"v_readfirstlane_b32 s{sT0}, v10")
        a(f"s_cmp_eq_u32 s{sT0}, 0")
        a("s_cbranch_scc1 L_qx")
        a("s_mov_b64 exec, 1")
        a(f"ds_add_u32 v4, v11 offset:{C_QDONE}")
        a("s_mov_b64 exec, -1")
        self.stamp(5)
        a("s_waitcnt vmcnt(0)")
        self.get_token(C)
        a(f"s_mov_b32 s{sSPIN}, {SPIN}")
        a("s_nop 0")
        a("L_f1:")
        a(f"v_cmp_ne_u64 vcc, {sp(sTOK)}, {vr(C+2,2)}")
        a(f"v_cmp_ne_u64 {sp(sM0)}, {sp(sTOK)}, {vr(C+4,2)}")
        a("s_nop 0")
        a(f"s_or_b64 vcc, vcc, {sp(sM0)}")
        a("s_cbranch_scc0 L_f1d")
        a(f"buffer_load_dwordx2 {vr(C+2,2)}, v5, {S_WS}, s{sT2} offen sc1")
        a(f"buffer_load_dwordx2 {vr(C+4,2)}, v5, {S_WS}, s{sT2} offen offset:1024 sc1")
        a(f"s_sub_u32 s{sSPIN}, s{sSPIN}, 1")
        a("s_waitcnt vmcnt(0)")
        a("s_cbranch_scc0 L_f1")
        a("L_f1d:")
        self.stamp(6)
        SC = "" if "nosc" in OPT else " sc1"
        def Kr(t): return KV + 12 * (t % 4)
        def ldK(t, off): return f"buffer_load_dwordx4 {vr(Kr(t),4)}, v5, {S_WS}, s{sKV} offen offset:{off}" + SC
        def ldV(t, i): return f"buffer_load_dwordx4 {vr(Kr(t)+4+4*i,4)}, v2, {S_WS}, s{sKV} offen offset:{1024+1024*i}" + SC
        a(f"s_mul_i32 s{sKV}, s{sKH}, {32*3072}")
        a(f"s_add_u32 s{sT0}, s{sKV}, {(32+2)*3072}")
        a(ldK(0, 0))
        for t in range(3):
            a(ldV(t, 0)); a(ldV(t, 1)); a(ldK(t + 1, 3072))
            if t < 2: a(f"s_add_u32 s{sKV}, s{sKV}, 3072")
        if "prioA" in OPT: a("s_setprio 3")
        a("s_waitcnt vmcnt(9)")
        self.stamp(7)
        a(f"v_mfma_f32_32x32x16_bf16 {vr(S0,16)}, {vr(Kr(0),4)}, {vr(Q,4)}, 0")
        a("s_nop 11")
        a(f"v_max3_f32 v{C}, v{S0}, v{S0+1}, v{S0+2}")
        a(f"v_max3_f32 v{C+1}, v{S0+3}, v{S0+4}, v{S0+5}")
        a(f"v_max3_f32 v{C+2}, v{S0+6}, v{S0+7}, v{S0+8}")
        a(f"v_max3_f32 v{C+3}, v{S0+9}, v{S0+10}, v{S0+11}")
        a(f"v_max3_f32 v{C}, v{C}, v{S0+12}, v{S0+13}")
        a(f"v_max3_f32 v{C+1}, v{C+1}, v{S0+14}, v{S0+15}")
        a(f"v_max3_f32 v{C}, v{C}, v{C+2}, v{C+3}")
        a(f"v_max_f32 v{C}, v{C}, v{C+1}")
        a(f"v_mov_b32 v{C+1}, v{C}")
        a("s_nop 1")
        a(f"v_permlane32_swap_b32 v{C}, v{C+1}")
        a(f"v_min_f32 v{C+2}, -v{C}, -v{C+1}")
        a(f"v_min_f32 v{C+3}, -v{C}, -v{C+1}")
        for r in (0, 4, 6, 8, 10, 12, 14):
            a(f"v_pk_mov_b32 {vr(C+r,2)}, {vr(C+2,2)}, {vr(C+2,2)}")
        a("s_nop 1")
        a(f"v_mfma_f32_32x32x16_bf16 {vr(S0,16)}, {vr(Kr(0),4)}, {vr(Q,4)}, {vr(C,16)}")
        a("s_waitcnt vmcnt(7)")
        a("s_nop 9")
        self.cstamp(3)
        a("s_branch L_mid")
        def slot(t, u, part):
            b = SB[u % 2]; p = SB[(u + 1) % 2]
            pu = (u + 3) % 4; pt = t if u > 0 else t - 1
            nu = (u + 1) % 4; nt = t if u < 3 else t + 1
            e = lambda i: a(f"v_exp_f32 v{b+i}, v{b+i}")
            c = lambda k: a(f"v_cvt_pk_bf16_f32 v{b+k}, v{b+2*k}, v{b+2*k+1}")
            extra = {}
            if u == 0: extra = {0: f"s_add_u32 s{sKV}, s{sKV}, 3072"}
            if u == 1: extra = {0: ldV(t + 3, 0), 1: ldV(t + 3, 1)}
            if u == 2 and t % 4 == 3: extra = {0: f"s_cmp_lg_u32 s{sKV}, s{sT0}"}
            if u == 3: extra = {0: "s_waitcnt vmcnt(6)", 1: ldK(t + 4, 3072)}
            def x(k):
                if k in extra: a(extra[k])
            if part in ("head", "all"):
                e(0)
                a(f"v_cvt_pk_bf16_f32 v{p+7}, v{p+14}, v{p+15}")
                e(1); e(2); c(0)
                a(f"v_mfma_f32_32x32x16_bf16 {vr(O+16*pu,16)}, {vr(Kr(pt)+8,4)}, {vr(p+4,4)}, {vr(O+16*pu,16)}")
                x(0)
                e(3); e(4); c(1); e(5); e(6); c(2)
                a(f"v_mfma_f32_32x32x16_bf16 {vr(p,16)}, {vr(Kr(nt),4)}, {vr(Q+4*nu,4)}, {vr(C,16)}")
                x(1)
                e(7); e(8); c(3); e(9); e(10); c(4); e(11)
                a(f"v_mfma_f32_32x32x16_bf16 {vr(O+16*u,16)}, {vr(Kr(t)+4,4)}, {vr(b,4)}, {vr(O+16*u,16)}")
                x(2)
            if part in ("tail", "all"):
                e(12); c(5); e(13); e(14); c(6); e(15)
        a(".p2align 6")
        a("L_loop:")
        slot(3, 3, "tail")
        a("L_mid:")
        for t in range(4):
            for u in range(4):
                slot(t, u, "head" if (t, u) == (3, 3) else "all")
        a("s_cbranch_scc1 L_loop")
        slot(3, 3, "tail")
        a("s_nop 0")
        a(f"v_cvt_pk_bf16_f32 v{S1+7}, v{S1+14}, v{S1+15}")
        a(f"s_lshl_b32 s{sT0}, s{sWV}, 13")
        a(f"v_add_u32 v6, s{sT0}, v5")
        a(f"v_mfma_f32_32x32x16_bf16 {vr(O+48,16)}, {vr(Kr(3)+8,4)}, {vr(S1+4,4)}, {vr(O+48,16)}")
        self.stamp(8)
        self.cstamp(11)
        a("v_xor_b32 v7, 0x2000, v6")
        a(f"v_mov_b32 v{O+32+9}, v{C}")
        a("s_barrier")
        a(f"ds_write_b128 v6, {vr(O+32,4)}")
        a(f"ds_write_b128 v6, {vr(O+36,4)} offset:1024")
        a(f"ds_write_b64 v6, {vr(O+40,2)} offset:2048")
        a("s_nop 5")
        a(f"ds_write_b128 v6, {vr(O+48,4)} offset:3072")
        a(f"ds_write_b128 v6, {vr(O+52,4)} offset:4096")
        a(f"ds_write_b32 v6, v{O+56} offset:5120")
        a(f"s_lshl1_add_u32 s{sT0}, s{sQT}, s{sG}")
        a(f"s_lshl_b32 s{sT0}, s{sT0}, 15")
        a(f"s_add_u32 s{sT0}, s{sT0}, {OFR:#x}")
        a(f"s_lshl1_add_u32 s{sT1}, s{sHG}, s{sKH}")
        a(f"s_lshl_b32 s{sT1}, s{sT1}, 11")
        a(f"s_add_u32 s{sT1}, s{sT1}, s{sT0}")
        a(f"s_mov_b32 s{sC1}, {f32(2.0**-40)}")
        a(f"v_mov_b32 v8, {f32(2.0**40)}")
        a("s_waitcnt lgkmcnt(0)")
        a("s_barrier")
        P = S0
        a(f"ds_read_b64 {vr(P+8,2)}, v7 offset:2048")
        a(f"ds_read_b32 v{P+20}, v7 offset:5120")
        a(f"ds_read_b128 {vr(P,4)}, v7")
        a(f"ds_read_b128 {vr(P+4,4)}, v7 offset:1024")
        a(f"ds_read_b128 {vr(P+12,4)}, v7 offset:3072")
        a(f"ds_read_b128 {vr(P+16,4)}, v7 offset:4096")
        a("s_waitcnt lgkmcnt(4)")
        a(f"v_sub_f32 v10, v{C}, v{P+9}")
        a("v_exp_f32 v10, v10")
        a(f"v_med3_f32 v12, v{P+8}, s{sC1}, v8")
        a(f"v_med3_f32 v13, v{P+20}, s{sC1}, v8")
        a(f"v_fmac_f32 v{O+8}, v10, v{P+8}")
        a(f"v_fmac_f32 v{O+16+8}, v10, v{P+20}")
        a(f"v_cmp_neq_f32 vcc, v12, v{P+8}")
        a(f"v_cmp_neq_f32 {sp(sM0)}, v13, v{P+20}")
        a(f"v_med3_f32 v12, v{O+8}, s{sC1}, v8")
        a(f"v_med3_f32 v13, v{O+16+8}, s{sC1}, v8")
        a(f"s_or_b64 {sp(sM0)}, {sp(sM0)}, vcc")
        a(f"v_cmp_neq_f32 vcc, v12, v{O+8}")
        a(f"v_cmp_neq_f32 {sp(sM1)}, v13, v{O+16+8}")
        a("v_mov_b32 v11, v10")
        a(f"s_or_b64 {sp(sM0)}, {sp(sM0)}, vcc")
        a("s_waitcnt lgkmcnt(0)")
        for u in range(2):
            for r in range(0, 8, 2):
                a(f"v_pk_fma_f32 {vr(O+16*u+r,2)}, {vr(P+12*u+r,2)}, v[10:11], {vr(O+16*u+r,2)}")
        a(f"s_or_b64 {sp(sM0)}, {sp(sM0)}, {sp(sM1)}")
        a("s_cbranch_scc1 L_fallback")
        a("L_fin:")
        a(f"v_rcp_f32 v10, v{O+8}")
        a(f"v_rcp_f32 v12, v{O+16+8}")
        a("s_nop 0")
        for u in range(2):
            for r in range(0, 8, 2):
                a(f"v_pk_mul_f32 {vr(O+16*u+r,2)}, {vr(O+16*u+r,2)}, {vr(10+2*u,2)} op_sel_hi:[1,0]")
            for r in range(4):
                a(f"v_cvt_pk_bf16_f32 v{Q+4*u+r}, v{O+16*u+2*r}, v{O+16*u+2*r+1}")
            a(f"buffer_store_dwordx4 {vr(Q+4*u,4)}, v5, {S_WS}, s{sT1} offen offset:{1024*u} sc1")
        WF = 128
        a("v_xor_b32 v9, 64, v3")
        for i in range(16):
            if i % 3 == 0 and i > 0: a("s_waitcnt lgkmcnt(3)")
            a(f"ds_read_b64_tr_b16 {vr(WF+8*i,2)}, v3 offset:{2048*i}")
            a(f"ds_read_b64_tr_b16 {vr(WF+8*i+2,2)}, v3 offset:{2048*i+1024}")
            a(f"ds_read_b64_tr_b16 {vr(WF+8*i+4,2)}, v9 offset:{2048*i}")
            a(f"ds_read_b64_tr_b16 {vr(WF+8*i+6,2)}, v9 offset:{2048*i+1024}")
        a("v_mov_b32 v11, 1")
        a(f"v_mov_b32 v12, s{sTOK}")
        a(f"v_mov_b32 v13, s{sTOK+1}")
        a(f"s_lshl_b32 s{sT2}, s{sQT}, 7")
        a(f"s_add_u32 s{sT2}, s{sT2}, {FL2:#x}")
        a(f"s_lshl4_add_u32 s{sT3}, s{sHG}, s{sT2}")
        a("s_waitcnt vmcnt(0)")
        a("s_mov_b64 exec, 1")
        a(f"ds_add_rtn_u32 v10, v4, v11 offset:{C_O}")
        a("s_waitcnt lgkmcnt(0)")
        a(f"v_readfirstlane_b32 s{sT4}, v10")
        a(f"s_cmp_lg_u32 s{sT4}, 3")
        a("s_cbranch_scc1 L_o_skip")
        a(f"buffer_store_dwordx2 v[12:13], v1, {S_WS}, s{sT3} offen sc1")
        a("L_o_skip:")
        a("s_mov_b64 exec, -1")
        self.stamp(9)
        a(f"s_lshl_b32 s{sT3}, s{sKH}, 6")
        a(f"s_add_u32 s{sT2}, s{sT2}, s{sT3}")
        a("v_and_b32 v10, 48, v5")
        a(f"s_mov_b32 s{sSPIN}, {SPIN}")
        a("L_f2:")
        a(f"buffer_load_dwordx2 v[12:13], v10, {S_WS}, s{sT2} offen sc1")
        a(f"s_sub_u32 s{sSPIN}, s{sSPIN}, 1")
        a("s_cbranch_scc1 L_f2d")
        a("s_waitcnt vmcnt(0)")
        a(f"v_cmp_ne_u64 vcc, {sp(sTOK)}, v[12:13]")
        a("s_cbranch_vccnz L_f2")
        a("L_f2d:")
        self.stamp(10)
        OF = 64; ACC = 32
        a(f"s_lshl_b32 s{sT3}, s{sKH}, 14")
        a(f"s_add_u32 s{sT0}, s{sT0}, s{sT3}")
        for i in range(16):
            a(f"buffer_load_dwordx4 {vr(OF+4*i,4)}, v5, {S_WS}, s{sT0} offen offset:{1024*(i%4)} sc1")
            if i % 4 == 3 and i < 15: a(f"s_add_u32 s{sT0}, s{sT0}, 4096")
        self.srd(64, P_OUT, 0x400000)
        a("v_and_b32 v10, 31, v0")
        a("v_lshlrev_b32 v10, 11, v10")
        a("v_lshrrev_b32 v11, 5, v0")
        a("v_lshl_add_u32 v10, v11, 4, v10")
        a(f"s_lshl1_add_u32 s{sT0}, s{sQT}, s{sG}")
        a(f"s_lshl_b32 s{sT0}, s{sT0}, 16")
        a(f"s_lshl1_add_u32 s{sT1}, s{sHG}, s{sKH}")
        a(f"s_lshl_b32 s{sT1}, s{sT1}, 6")
        a(f"s_add_u32 s{sT0}, s{sT0}, s{sT1}")
        a("v_add_u32 v6, 0x8000, v6")
        a("v_add_u32 v7, 0x8000, v7")
        for i in range(16):
            a(f"s_waitcnt vmcnt({15-i})")
            a(f"v_mfma_f32_32x32x16_bf16 {vr(ACC+16,16)}, {vr(WF+8*i+4,4)}, {vr(OF+4*i,4)}, {'0' if i==0 else vr(ACC+16,16)}")
            a(f"v_mfma_f32_32x32x16_bf16 {vr(ACC,16)}, {vr(WF+8*i,4)}, {vr(OF+4*i,4)}, {'0' if i==0 else vr(ACC,16)}")
        a("s_nop 10")
        for j in range(4):
            a(f"ds_write_b128 v6, {vr(ACC+16+4*j,4)} offset:{1024*j}")
        a("s_waitcnt lgkmcnt(0)")
        a("s_barrier")
        for j in range(4):
            a(f"ds_read_b128 {vr(OF+4*j,4)}, v7 offset:{1024*j}")
        for hf in range(2):
            a(f"s_waitcnt lgkmcnt({2-2*hf})")
            for r in range(8 * hf, 8 * hf + 8, 2):
                a(f"v_pk_add_f32 {vr(ACC+r,2)}, {vr(ACC+r,2)}, {vr(OF+r,2)}")
            for r in range(4 * hf, 4 * hf + 4):
                a(f"v_cvt_pk_bf16_f32 v{Q+r}, v{ACC+2*r}, v{ACC+2*r+1}")
            a("s_nop 0")
            a(f"v_permlane32_swap_b32 v{Q+4*hf}, v{Q+4*hf+2}")
            a(f"v_permlane32_swap_b32 v{Q+4*hf+1}, v{Q+4*hf+3}")
            a(f"buffer_store_dwordx4 {vr(Q+4*hf,4)}, v10, {S_O}, s{sT0} offen offset:{32*hf}")
        if STAMPS:
            a("s_waitcnt vmcnt(0)")
            a(f"s_memrealtime {sp(sST+2*3)}") if False else None
        self.dump_stamps(12)
        a("L_end:")
        a("s_endpgm")
        a("L_fallback:")
        K0 = KV
        M = 10
        a("v_mov_b32 v10, 0xff800000")
        a("v_mov_b32 v11, 0xff800000")
        a(f"s_mov_b32 s{sKV}, 0")
        a("L_fb1:")
        a(f"buffer_load_dwordx4 {vr(K0,4)}, v5, {S_WS}, s{sKV} offen sc1")
        a(f"s_add_u32 s{sKV}, s{sKV}, 3072")
        a("s_waitcnt vmcnt(0)")
        for u in range(2):
            a(f"v_mfma_f32_32x32x16_bf16 {vr(SB[u],16)}, {vr(K0,4)}, {vr(Q+4*u,4)}, 0")
        a("s_nop 11")
        for u in range(2):
            for r in range(0, 16, 2):
                a(f"v_max3_f32 v{M+u}, v{M+u}, v{SB[u]+r}, v{SB[u]+r+1}")
        a(f"s_cmp_lg_u32 s{sKV}, {64*3072}")
        a("s_cbranch_scc1 L_fb1")
        a("v_mov_b32 v12, v10")
        a("v_mov_b32 v13, v11")
        a("s_nop 1")
        a("v_permlane32_swap_b32 v10, v12")
        a("v_permlane32_swap_b32 v11, v13")
        a("v_max_f32 v10, v10, v12")
        a("v_max_f32 v11, v11, v13")
        for r in range(O, O + 32, 2):
            a(f"v_pk_mov_b32 {vr(r,2)}, 0, 0")
        a(f"s_mov_b32 s{sKV}, 0")
        a("L_fb2:")
        a(f"buffer_load_dwordx4 {vr(K0,4)}, v5, {S_WS}, s{sKV} offen sc1")
        a(f"buffer_load_dwordx4 {vr(K0+4,4)}, v2, {S_WS}, s{sKV} offen offset:1024 sc1")
        a(f"buffer_load_dwordx4 {vr(K0+8,4)}, v2, {S_WS}, s{sKV} offen offset:2048 sc1")
        a(f"s_add_u32 s{sKV}, s{sKV}, 3072")
        a("s_waitcnt vmcnt(0)")
        for u in range(2):
            a(f"v_mfma_f32_32x32x16_bf16 {vr(SB[u],16)}, {vr(K0,4)}, {vr(Q+4*u,4)}, 0")
        a("s_nop 11")
        for u in range(2):
            b = SB[u]
            for r in range(16):
                a(f"v_sub_f32 v{b+r}, v{b+r}, v{M+u}")
            for r in range(16):
                a(f"v_exp_f32 v{b+r}, v{b+r}")
            a("s_nop 0")
            for k in range(8):
                a(f"v_cvt_pk_bf16_f32 v{b+k}, v{b+2*k}, v{b+2*k+1}")
            a("s_nop 1")
            a(f"v_mfma_f32_32x32x16_bf16 {vr(O+16*u,16)}, {vr(K0+4,4)}, {vr(b,4)}, {vr(O+16*u,16)}")
            a(f"v_mfma_f32_32x32x16_bf16 {vr(O+16*u,16)}, {vr(K0+8,4)}, {vr(b+4,4)}, {vr(O+16*u,16)}")
        a(f"s_cmp_lg_u32 s{sKV}, {64*3072}")
        a("s_nop 7")
        a("s_cbranch_scc1 L_fb2")
        a("s_nop 7")
        a("s_branch L_fin")

    def xbar(self, target):
        a = self.a
        L = a.label("L_xb")
        a("s_waitcnt lgkmcnt(0)")
        a("s_mov_b64 exec, 1")
        a(f"ds_add_u32 v4, v3 offset:{C_XBAR}")
        a("s_mov_b64 exec, -1")
        self.lds_wait(C_XBAR, target)
    def lds_wait(self, off, target):
        a = self.a
        L = a.label("L_lw"); Ld = a.label("L_lwd")
        a(f"{L}:")
        a(f"ds_read_b32 v7, v4 offset:{off}")
        a("s_waitcnt lgkmcnt(0)")
        a(f"v_readfirstlane_b32 s{sT5}, v7")
        a(f"s_cmp_ge_u32 s{sT5}, {target}")
        a(f"s_cbranch_scc1 {Ld}")
        a("s_sleep 1")
        a(f"s_branch {L}")
        a(f"{Ld}:")

    def x_path(self):
        a = self.a
        a("L_X:")
        sXW = sKV
        a(f"s_sub_u32 s{sXW}, s{sWV}, 4")
        a(f"v_mov_b32 v4, {CNT}")
        a("v_mov_b32 v1, 0")
        a("v_mov_b32 v3, 1")
        a("v_and_b32 v2, 15, v0")
        a("v_lshl_add_u32 v6, v2, 2, v4")
        a("ds_write_b32 v6, v1")
        a(f"s_lshl1_add_u32 s{sT0}, s{sCP}, s{sG}")
        a(f"s_lshl1_add_u32 s{sT1}, s{sT0}, s{sKH}")
        a(f"s_lshl_b32 s{sT1}, s{sT1}, 7")
        a(f"v_lshl_add_u32 v6, v0, 1, s{sT1}")
        a(f"s_lshl_b32 s{sT0}, s{sT0}, 1")
        a(f"v_mov_b32 v7, s{sT0}")
        a(f"s_memrealtime {sp(sTOK)}")
        a("v_lshrrev_b32 v8, 4, v0")
        a("v_xor_b32 v9, v2, v8")
        a("v_lshlrev_b32 v9, 4, v9")
        a("v_lshl_add_u32 v10, v8, 10, v9")
        for i in range(1, 4):
            a(f"v_xor_b32 v{10+i}, {i<<6}, v10")
            a(f"v_add_u32 v{10+i}, {3072*i}, v{10+i}")
        a("v_lshrrev_b32 v8, 3, v0")
        a("v_and_b32 v9, 7, v0")
        a("v_bfe_u32 v14, v0, 4, 1")
        a("v_lshlrev_b32 v14, 2, v14")
        a("v_xor_b32 v9, v9, v14")
        a("v_lshlrev_b32 v9, 4, v9")
        a("v_lshl_add_u32 v14, v8, 10, v9")
        a("s_waitcnt lgkmcnt(0)")
        PR = 16
        for k, p in enumerate((P_LDT, P_LAR, P_AIM, P_CR, P_CI, P_D)):
            a(f"global_load_ushort v{PR+k}, v{7 if p in (P_LDT, P_D) else 6}, {sp(p)}")
        self.srd(8, P_X, 0x200000)
        self.srd(12, P_WQ, 0x80000)
        a(f"s_or_b32 s{sT0}, s2, s{sXW}")
        a("s_cbranch_scc1 L_notok")
        a(f"s_or_b32 s{sTOK}, s{sTOK}, 1")
        a(f"v_mov_b32 v8, s{sTOK}")
        a(f"v_mov_b32 v9, s{sTOK+1}")
        a("s_mov_b64 exec, 1")
        a(f"global_store_dwordx2 v1, v[8:9], {sp(P_DBG)} sc1")
        a("s_mov_b64 exec, -1")
        a("s_waitcnt vmcnt(0)")
        a("L_notok:")
        a("s_barrier")
        self.stamp(1)
        a(f"s_lshl_b32 s{sT0}, s{sQT}, 16")
        a(f"s_lshl_b32 s{sT1}, s{sXW}, 14")
        a(f"s_add_u32 s{sT0}, s{sT0}, s{sT1}")
        a(f"s_lshl_b32 s{sT1}, s{sXW}, 12")
        a(f"s_lshl_b32 s{sT2}, s{sXW}, 15")
        a(f"s_lshl_b32 s{sT3}, s{sHG}, 7")
        a(f"s_add_u32 s{sT2}, s{sT2}, s{sT3}")
        for c in range(4):
            a(f"s_add_u32 m0, s{sT1}, {XT + 16384*c}")
            if c: a(f"s_add_u32 s{sT0}, s{sT0}, 256")
            else: a("s_nop 0")
            for i in range(4):
                a(f"buffer_load_dwordx4 v{10+i}, {S_A}, s{sT0} offen offset:{1024*i} lds")
            a(f"s_add_u32 m0, s{sT1}, {(WQLO if c < 2 else WQHI) + 16384*(c%2)}")
            for i in range(4):
                a(f"s_add_u32 s{sT3}, s{sT2}, {131072*c + 7168*i}")
                a(f"buffer_load_dwordx4 v14, {S_B}, s{sT3} offen offset:{1024*i} lds")
        self.srd(8, P_U, 0x200000)
        a(f"s_lshl_b32 s{sT0}, s{sIDX}, 16")
        a(f"s_lshl_b32 s{sT3}, s{sXW}, 14")
        a(f"s_add_u32 s{sT0}, s{sT0}, s{sT3}")
        a(f"s_lshl_b32 s{sT3}, s{sXCD}, 7")
        a(f"s_add_u32 s{sT0}, s{sT0}, s{sT3}")
        a("v_lshlrev_b32 v8, 10, v2")
        a(f"buffer_load_dword v15, v8, {S_A}, s{sT0} offen")
        self.srd(4, P_WS, 0x10000000)
        a("v_and_b32 v11, 31, v0")
        a("v_lshrrev_b32 v12, 5, v0")
        a("v_and_b32 v13, 3, v0")
        a("v_bfe_u32 v22, v0, 3, 1")
        a("v_lshl_add_u32 v13, v22, 2, v13")
        a(f"v_add_u32 v13, s{sKH}, v13")
        a("v_bfe_u32 v22, v0, 2, 1")
        a("v_bfe_u32 v23, v0, 4, 1")
        a("v_lshl_add_u32 v22, v22, 1, v23")
        P1 = sum(v << (3 * e) for e, v in enumerate([0, 0, 1, 2, 2, 2, 3, 4, 4]))
        P2 = sum(v << (3 * e) for e, v in enumerate([0, 0, 0, 1, 1, 1, 2, 2, 2]))
        a(f"v_mov_b32 v23, {P2:#x}")
        a(f"v_mov_b32 v24, {P1:#x}")
        a("v_cmp_eq_u32 vcc, 1, v22")
        a("v_mul_u32_u24 v25, 3, v13")
        a("v_mad_u32_u24 v26, v22, 3, 40")
        a("v_cndmask_b32 v23, v23, v24, vcc")
        a("v_cndmask_b32 v26, v26, 41, vcc" .replace("v_cndmask_b32", "v_cndmask_b32_e64"))
        a("v_bfe_u32 v23, v23, v25, 3")
        a("v_add_u32 v23, v23, v26")
        a("v_cmp_eq_u32 vcc, 0, v22")
        a("v_add_u32 v24, 32, v13")
        a("v_lshl_add_u32 v25, v22, 1, 52")
        a("v_cndmask_b32 v23, v23, v24, vcc")
        a("v_cmp_lt_u32 vcc, 4, v13")
        a(f"s_mul_i32 s{sT0}, s{sG}, {2*TBS}")
        a(f"v_lshl_add_u32 v26, v12, 4, s{sT0}" if TB == 0 else "ERR")
        a("v_addc_co_u32 v25, vcc, 0, v25, vcc")
        a("v_mov_b32 v27, 272")
        a("v_mad_u32_u24 v8, v23, v27, v26")
        a("v_mad_u32_u24 v9, v25, v27, v26")
        a("v_mad_u32_u24 v10, v11, v27, v26")
        a(f"s_mul_i32 s{sT0}, s{sXW}, {TBS}")
        a(f"v_lshl_add_u32 v13, v0, 2, s{sT0}")
        a("s_waitcnt vmcnt(33)")
        self.stamp(2)
        for k in range(6):
            a(f"v_lshlrev_b32 v{PR+k}, 16, v{PR+k}")
        a(f"v_mul_f32 v16, {f32(LOG2E)}, v16")
        a(f"v_mul_f32 v17, {f32(LOG2E)}, v17")
        a("v_exp_f32 v16, v16")
        a("v_exp_f32 v17, v17")
        a("s_nop 0")
        a("v_cvt_pk_bf16_f32 v17, v16, v17")
        a("v_lshlrev_b32 v16, 16, v17")
        a("v_and_b32 v17, 0xffff0000, v17")
        a("v_mul_f32 v17, v17, v16")
        a("v_mul_f32 v18, v18, v16")
        a(f"v_mul_f32 v17, {f32(-LOG2E)}, v17")
        a(f"v_mul_f32 v18, {f32(1.0/(2*math.pi))}, v18")
        a("v_add_f32 v16, v16, v16")
        E1, E8, E256 = 24, 26, 28
        Wc = 32
        a(f"v_mul_f32 v{Wc}, v19, v16")
        a(f"v_mul_f32 v{Wc+1}, -v20, v16" .replace("v_mul_f32", "v_mul_f32_e64"))
        for E, p in ((E8, 8.0), (E1, 1.0), (E256, 256.0)):
            if p != 1.0:
                a(f"v_mul_f32 v30, {f32(p)}, v17")
                a(f"v_mul_f32 v31, {f32(p)}, v18")
                a("v_exp_f32 v30, v30")
                a("v_fract_f32 v31, v31")
            else:
                a("v_exp_f32 v30, v17")
                a("v_fract_f32 v31, v18")
            a(f"v_cos_f32 v{E}, v31")
            a(f"v_sin_f32 v{E+1}, v31")
            a("s_nop 0")
            a(f"v_pk_mul_f32 {vr(E,2)}, {vr(E,2)}, v[30:31] op_sel_hi:[1,0]")
        T = 64
        def cmul(d, z, w, conj):
            return [f"v_pk_mul_f32 {vr(d,2)}, {vr(z,2)}, {vr(w,2)} op_sel_hi:[1,0]",
                    f"v_pk_fma_f32 {vr(d,2)}, {vr(z,2)}, {vr(w,2)}, {vr(d,2)} op_sel:[1,1,0] op_sel_hi:[0,1,1] " + ("neg_hi:[0,1,0]" if conj else "neg_lo:[0,1,0]")]
        def cv(row, z): return f"v_cvt_pk_bf16_f32 v{T+row}, v{z}, v{z+1}"
        ych = []
        Yr = [50, 52]
        ych.append([f"v_mov_b32 v{T}, 0x3f80", cv(1, E8)])
        prev = E8
        for j in range(2, 32):
            d = Yr[j % 2]
            ych.append(cmul(d, prev, E8, False) + [cv(j, d)])
            prev = d
        wch = [[cv(32, Wc)]]
        for e in range(1, 9):
            wch.append(cmul(Wc + 2 * e, Wc + 2 * e - 2, E1, True) + [cv(32 + e, Wc + 2 * e)])
        Z = {0: 54, 4: 56, 8: 58}
        cur = {e: Wc + 2 * e for e in (0, 2, 4, 6, 8)}
        alt = {0: 54, 2: Wc + 2, 4: 56, 6: Wc + 6, 8: 58}
        row = 41
        for blk in range(1, 8):
            es = (0, 2, 4, 6, 8) if blk == 1 else (0, 4, 8) if blk < 4 else (0, 8)
            for e in es:
                wch.append(cmul(alt[e], cur[e], E256, True) + [cv(row, alt[e])])
                cur[e], alt[e] = alt[e], cur[e]
                row += 1
        assert row == 60
        for k in range(max(len(ych), len(wch))):
            y = ych[k] if k < len(ych) else []
            w = wch[k] if k < len(wch) else []
            for j in range(3):
                if j < len(y): a(y[j])
                if j < len(w): a(w[j])
        self.stamp(3)
        a("s_waitcnt vmcnt(17)")
        a("s_barrier")
        a(f"s_lshl_b32 s{sT0}, s{sXW}, 13")
        a(f"s_sub_u32 s{sT0}, {2040*1024}, s{sT0}")
        a(f"s_lshl2_add_u32 s{sT0}, s{sCP}, s{sT0}")
        a("v_lshlrev_b32 v22, 15, v0")
        a(f"v_sub_u32 v22, s{sT0}, v22")
        a(f"s_movk_i32 s{sC1}, 4096")
        a("s_waitcnt vmcnt(0)")
        a("s_barrier")
        if "prioX" in OPT: a("s_setprio 3")
        self.stamp(4)
        for r in range(60):
            a(f"ds_write_b32 v13, v{T+r} offset:{272*r}")
        U = 24
        for e in range(8):
            a(f"buffer_load_dword v{U+e}, v22, {S_A}, {'0' if e < 4 else 's%d' % sC1} offen offset:{1024*(e%4)}")
        self.xbar(4)
        KA, KB, FR = 32, 48, 64
        def krd(s):
            r = FR + 12 * (s % 6)
            off = (s // 8) * TBS + (s % 8) * 32
            a(f"ds_read_b128 {vr(r,4)}, v10 offset:{off}")
            a(f"ds_read_b128 {vr(r+4,4)}, v8 offset:{off}")
            a(f"ds_read_b128 {vr(r+8,4)}, v9 offset:{off}")
        for s in range(4): krd(s)
        a(f"s_cmp_eq_u32 s{sKH}, 0")
        a(f"s_mov_b32 s{sT0}, 0xaaaaaaaa")
        a(f"s_cselect_b32 s{sM0}, s{sT0}, 0")
        a(f"s_cselect_b32 s{sM0+1}, s{sT0}, 0")
        a(f"s_cselect_b32 s{sM1}, 0, s{sT0}")
        a(f"s_cselect_b32 s{sM1+1}, 0, s{sT0}")
        a("s_cselect_b64 vcc, 1, 0")
        a("v_cndmask_b32 v21, 0, v21, vcc")
        a(f"s_mul_i32 s{sT0}, s{sXW}, {KSS}")
        a(f"s_add_u32 s{sT0}, s{sT0}, {KS+64}")
        a("v_lshlrev_b32 v13, 10, v12")
        a("v_lshl_add_u32 v13, v11, 4, v13")
        a(f"v_add_u32 v13, s{sT0}, v13")
        for s in range(16):
            r = FR + 12 * (s % 6)
            a(f"s_waitcnt lgkmcnt({min(9, 3*(15-s))})")
            a(f"v_mfma_f32_32x32x16_bf16 {vr(KA,16)}, {vr(r+4,4)}, {vr(r,4)}, {'0' if s==0 else vr(KA,16)}")
            a(f"v_mfma_f32_32x32x16_bf16 {vr(KB,16)}, {vr(r+8,4)}, {vr(r,4)}, {'0' if s==0 else vr(KB,16)}")
            if s + 4 < 16: krd(s + 4)
        a(f"s_mul_i32 s{sT0}, s{sXW}, {KSS}")
        a(f"s_add_u32 s{sT0}, s{sT0}, {KS + KSS + 60}")
        a("v_lshlrev_b32 v16, 2, v2")
        a(f"v_sub_u32 v16, s{sT0}, v16")
        a("v_bfe_u32 v17, v0, 4, 1")
        a(f"v_mul_u32_u24 v17, {KSS}, v17")
        a("v_sub_u32 v16, v16, v17")
        a("s_nop 3")
        a(f"v_add_f32 v{KA}, v{KA}, v21")
        for r in range(8):
            a(f"v_cvt_pk_bf16_f32 v{KA+r}, v{KA+2*r}, v{KA+2*r+1}")
        a(f"v_cndmask_b32 v{KB+3}, v{KB+3}, v{KB+4}, {sp(sM1)}")
        a(f"v_cndmask_b32 v{KB+11}, v{KB+11}, v{KB+12}, {sp(sM1)}")
        a(f"v_cndmask_b32 v{KB+4}, v{KB+4}, v{KB+5}, {sp(sM0)}")
        a(f"v_cndmask_b32 v{KB+12}, v{KB+12}, v{KB+13}, {sp(sM0)}")
        a(f"ds_write_b128 v13, {vr(KA,4)}")
        a(f"ds_write_b128 v13, {vr(KA+4,4)} offset:512")
        for r in range(8):
            a(f"v_cvt_pk_bf16_f32 v{KB+r}, v{KB+2*r}, v{KB+2*r+1}")
        a(f"ds_write_b128 v13, {vr(KB,4)} offset:2048")
        a(f"ds_write_b128 v13, {vr(KB+4,4)} offset:2560")
        a(f"s_cmp_lg_u32 s{sKH}, 0")
        a("s_cbranch_scc1 L_nopad")
        a(f"v_lshlrev_b32 v17, 16, v{KA}")
        a("v_cndmask_b32 v17, 0, v17, vcc")
        a("s_mov_b32 exec_hi, 0")
        a("ds_write_b32 v16, v17")
        a("s_mov_b32 exec_hi, -1")
        a("L_nopad:")
        self.stamp(5)
        self.lds_wait(C_QDONE, 4)
        self.srd(12, P_WO, 0x80000)
        a(f"s_lshl_b32 s{sT3}, s{sXW}, 14")
        a(f"s_add_u32 s{sT3}, s{sT3}, {WO}")
        a(f"s_lshl_b32 s{sT2}, s{sXW}, 17")
        a(f"s_lshl_b32 s{sT0}, s{sHG}, 7")
        a(f"s_add_u32 s{sT2}, s{sT2}, s{sT0}")
        a(f"s_add_u32 s{sT1}, s{sT2}, 131072")
        a("L_wo:")
        a(f"s_mov_b32 m0, s{sT3}")
        a(f"s_add_u32 s{sT3}, s{sT3}, 1024")
        a(f"buffer_load_dwordx4 v14, {S_B}, s{sT2} offen lds")
        a(f"s_add_u32 s{sT2}, s{sT2}, 8192")
        a(f"s_cmp_lg_u32 s{sT2}, s{sT1}")
        a("s_cbranch_scc1 L_wo")
        a(f"s_mul_i32 s{sT0}, s{sXW}, 1536")
        a(f"s_add_u32 s{sT0}, s{sT0}, {UB}")
        a(f"v_add_u32 v16, s{sT0}, v5")
        a("v_mul_u32_u24 v17, 5632, v12")
        a("v_add_u32 v17, v17, v16")
        a("v_pk_mov_b32 v[40:41], 0, 0")
        a("v_pk_mov_b32 v[42:43], 0, 0")
        a("ds_write_b128 v17, v[40:43] offset:1024")
        a(f"s_mov_b32 s{sC2}, 0x05040100")
        a(f"s_mov_b32 s{sC3}, 0x07060302")
        a("s_waitcnt vmcnt(16)")
        self.stamp(6)
        for jj in range(4):
            a(f"v_perm_b32 v{32+jj}, v{U+6-2*jj}, v{U+7-2*jj}, s{sC2}")
        for jj in range(4):
            a(f"v_perm_b32 v{36+jj}, v{U+6-2*jj}, v{U+7-2*jj}, s{sC3}")
        a("ds_write_b128 v16, v[32:35]")
        a("ds_write_b128 v16, v[36:39] offset:6144")
        a("v_and_b32 v16, 1, v0")
        a("v_xor_b32 v16, 1, v16")
        a(f"v_mul_u32_u24 v16, {KSS-2}, v16")
        a("v_lshl_add_u32 v16, v11, 1, v16")
        a("v_lshl_add_u32 v16, v12, 4, v16")
        a(f"s_mul_i32 s{sT0}, s{sG}, {2*KSS}")
        a(f"s_lshl_b32 s{sT1}, s{sKH}, 5")
        a(f"s_add_u32 s{sT0}, s{sT0}, s{sT1}")
        a(f"s_add_u32 s{sT0}, s{sT0}, {KS + 64 - 62}")
        a(f"v_add_u32 v8, s{sT0}, v16")
        a("v_add_u32 v9, 2048, v8")
        a(f"s_mul_i32 s{sT0}, s{sXW}, 3072")
        a(f"s_add_u32 s{sT0}, s{sT0}, {UB + 31*16}")
        a("v_mul_u32_u24 v16, 1536, v12")
        a("v_lshlrev_b32 v17, 4, v11")
        a("v_sub_u32 v16, v16, v17")
        a(f"v_add_u32 v10, s{sT0}, v16")
        Y0, Y1 = 32, 48
        self.xbar(8)
        self.stamp(7)
        for r in range(Y0, Y0 + 32, 2):
            a(f"v_pk_mov_b32 {vr(r,2)}, 0, 0")
        UN = 4
        def crd(k, d):
            r = FR + 16 * (k % 4)
            a(f"ds_read2_b32 {vr(r,2)}, v8 offset0:{16*d} offset1:{16*d+1}")
            a(f"ds_read2_b32 {vr(r+2,2)}, v8 offset0:{16*d+2} offset1:{16*d+3}")
            a(f"ds_read_b128 {vr(r+8,4)}, v10 offset:{512+16*d}")
            a(f"ds_read_b128 {vr(r+12,4)}, v10 offset:{16*d}")
            a(f"ds_read2_b32 {vr(r+4,2)}, v9 offset0:{16*d} offset1:{16*d+1}")
            a(f"ds_read2_b32 {vr(r+6,2)}, v9 offset0:{16*d+2} offset1:{16*d+3}")
        crd(0, 0); crd(1, 1)
        a(f"s_mov_b32 s{sT0}, {32//UN}")
        a("L_conv:")
        for k in range(UN):
            r = FR + 16 * (k % 4)
            a("s_waitcnt lgkmcnt(6)")
            a(f"v_mfma_f32_32x32x16_bf16 {vr(Y0,16)}, {vr(r,4)}, {vr(r+8,4)}, {vr(Y0,16)}")
            a(f"v_mfma_f32_32x32x16_bf16 {vr(Y1,16)}, {vr(r,4)}, {vr(r+12,4)}, {vr(Y1,16)}")
            crd(k + 2, k + 2)
            a(f"v_mfma_f32_32x32x16_bf16 {vr(Y1,16)}, {vr(r+4,4)}, {vr(r+8,4)}, {vr(Y1,16)}")
        a(f"v_add_u32 v8, {64*UN}, v8")
        a(f"v_add_u32 v9, {64*UN}, v9")
        a(f"v_add_u32 v10, {16*UN}, v10")
        a(f"s_sub_u32 s{sT0}, s{sT0}, 1")
        a(f"s_cmp_lg_u32 s{sT0}, 0")
        a("s_cbranch_scc1 L_conv")
        self.stamp(8)
        a(f"s_lshl_b32 s{sT0}, s{sXW}, 13")
        a(f"v_add_u32 v8, s{sT0}, v5" if YX == 0 else "ERR")
        a(f"s_lshl_b32 s{sT0}, s{sXW}, 11")
        a(f"v_add_u32 v9, s{sT0}, v5")
        a("s_nop 3")
        for j in range(8):
            a(f"ds_write_b128 v8, {vr(Y0+4*j,4)} offset:{1024*j}")
        self.srd(64, P_OUT, 0x400000)
        a("v_lshlrev_b32 v10, 16, v11")
        a("v_lshl_add_u32 v10, v12, 13, v10")
        a(f"s_lshl_b32 s{sT0}, s{sG}, 21")
        a(f"s_lshl_b32 s{sT1}, s{sKH}, 15")
        a(f"s_add_u32 s{sT0}, s{sT0}, s{sT1}")
        a(f"s_lshl2_add_u32 s{sT0}, s{sCP}, s{sT0}")
        a(f"s_add_u32 s{sT0}, s{sT0}, 1024")
        a(f"s_add_u32 s{sT1}, s{sT0}, 4096")
        a(f"s_add_u32 s{sT2}, s{sT0}, 16384")
        a(f"s_add_u32 s{sT3}, s{sT0}, 20480")
        self.xbar(12)
        for src in range(4):
            for hf in range(2):
                a(f"ds_read_b128 {vr(FR+8*src+4*hf,4)}, v9 offset:{8192*src+1024*hf}")
        a("s_waitcnt lgkmcnt(4)")
        for r in range(0, 8, 2):
            a(f"v_pk_add_f32 {vr(FR+r,2)}, {vr(FR+r,2)}, {vr(FR+8+r,2)}")
        a("s_waitcnt lgkmcnt(0)")
        for r in range(0, 8, 2):
            a(f"v_pk_add_f32 {vr(FR+16+r,2)}, {vr(FR+16+r,2)}, {vr(FR+24+r,2)}")
        for rr in range(8):
            a(f"v_cvt_pk_bf16_f32 v{FR+rr}, v{FR+rr}, v{FR+16+rr}")
            so = [sT0, sT1, sT2, sT3][(rr // 4) * 2 + (rr % 4) // 2]
            a(f"buffer_store_dword v{FR+rr}, v10, {S_O}, s{so} offen offset:{2048*(rr%2)}")
        self.stamp(9)
        a("s_waitcnt vmcnt(0)")
        self.stamp(10)
        self.dump_stamps(12)
        a("s_endpgm")

def generate(stamps=False):
    global STAMPS
    STAMPS = stamps
    g = G()
    g.head()
    g.a_path()
    g.x_path()
    probs = g.a.check()
    hdr = open(f"cdna_kernels/{NAME}.s.ref").read().split("\n")
    top = [l for l in hdr if l.startswith(";") and "@launch" not in l and hdr.index(l) < 20]
    txt = "\n".join(top) + f"\n; @launch grid=(256,1,1) block=(512,1,1) lds={LDS_TOTAL}\n"
    txt += f""".amdgcn_target "amdgcn-amd-amdhsa--gfx950"
.text
.globl {NAME}_kernel
.p2align 8
.type {NAME}_kernel,@function
{NAME}_kernel:
"""
    txt += g.a.text()
    txt += f""".section .rodata,"a"
.p2align 6
.amdhsa_kernel {NAME}_kernel
  .amdhsa_next_free_vgpr 256
  .amdhsa_next_free_sgpr 102
  .amdhsa_accum_offset 256
  .amdhsa_group_segment_fixed_size 0
  .amdhsa_kernarg_size 120
  .amdhsa_user_sgpr_count 2
  .amdhsa_user_sgpr_kernarg_segment_ptr 1
  .amdhsa_system_sgpr_workgroup_id_x 1
.end_amdhsa_kernel
"""
    return txt, probs

if __name__ == "__main__":
    out = sys.argv[1] if len(sys.argv) > 1 else f"cdna_kernels/{NAME}.s"
    for x in sys.argv[2:]:
        if x.startswith("+"): OPT.add(x[1:])
    txt, probs = generate(stamps="--stamps" in sys.argv)
    for p in probs: print("HAZARD", p)
    open(out, "w").write(txt)
    print("wrote", out, len(txt))
```
